```python
import torch

def _softmax(x, axis=-1):
    return torch.softmax(x, dim=axis)
def _gelu(x):
    return torch.nn.functional.gelu(x, approximate="tanh")
def _silu(x):
    return torch.nn.functional.silu(x)
def _sigmoid(x):
    return torch.sigmoid(x)
def _layernorm(x, axis=-1, eps=1e-5):
    m = x.mean(dim=axis, keepdim=True)
    v = x.var(dim=axis, keepdim=True, unbiased=False)
    return (x - m) / torch.sqrt(v + eps)
def _scatter_add(tgt, idx, src, axis=0):
    return tgt.clone().index_add_(axis, idx, src)
def _segment_sum(src, seg, n):
    out = torch.zeros((n,) + src.shape[1:], dtype=src.dtype)
    return out.index_add_(0, seg, src)
def _pad(x, pw):
    flat = tuple(v for pair in reversed(pw) for v in pair)
    return torch.nn.functional.pad(x, flat)

kernel_name = 'gated_mix__compressed_kv_cla__swiglu_ffn__decode'

def setup_inputs():

    _w = (lambda a: (lambda t: t.to(torch.bfloat16) if t.is_floating_point() else t)(torch.as_tensor(a)))
    def _A_setup():
        B, H, Sq, Sk, D, M = 1, 32, 1, 8192, 128, 512
        Dc = 4 * D
        return {
            "x": _w((lambda *s: torch.randn(*s, dtype=torch.bfloat16) * 0.05)(B, Sq, M)),
            "c_kv": _w((lambda *s: torch.randn(*s, dtype=torch.bfloat16) * 0.8)(B, Sk, Dc)),
            "w_q": _w((lambda *s: torch.randn(*s, dtype=torch.bfloat16) * 6.4)(M, H, D) * (M ** -0.5)),
            "w_uk": _w((lambda *s: torch.randn(*s, dtype=torch.bfloat16) * 6.4)(Dc, H, D) * (Dc ** -0.5)),
            "w_uv": _w((lambda *s: torch.randn(*s, dtype=torch.bfloat16) * 0.8)(Dc, H, D) * (Dc ** -0.5)),
            "w_o": _w((lambda *s: torch.randn(*s, dtype=torch.bfloat16) * 0.8)(H, D, M) * ((H * D) ** -0.5)),
        }
    _A_in = _A_setup()

    def _B_setup():
        B, S, D, F = 1, 1, 512, 1376
        return {
            "x": _w((lambda *s: torch.randn(*s, dtype=torch.bfloat16) * 0.05)(B, S, D)),
            "w_gate": _w((lambda *s: torch.randn(*s, dtype=torch.bfloat16) * 0.1)(D, F)),
            "w_up": _w((lambda *s: torch.randn(*s, dtype=torch.bfloat16) * 0.1)(D, F)),
            "w_down": _w((lambda *s: torch.randn(*s, dtype=torch.bfloat16) * 0.1)(F, D)),
        }
    _B_in = _B_setup()

    return {
        "A_x": _A_in["x"],
        "A_c_kv": _A_in["c_kv"],
        "A_w_q": _A_in["w_q"],
        "A_w_uk": _A_in["w_uk"],
        "A_w_uv": _A_in["w_uv"],
        "A_w_o": _A_in["w_o"],
        "B_x": _B_in["x"],
        "B_w_gate": _B_in["w_gate"],
        "B_w_up": _B_in["w_up"],
        "B_w_down": _B_in["w_down"],
        "gate_w": _w((lambda *s: torch.randn(*s, dtype=torch.bfloat16) * 0.05)(512) * 16.0),
    }

def reference(A_x, A_c_kv, A_w_q, A_w_uk, A_w_uv, A_w_o, B_x, B_w_gate, B_w_up, B_w_down, gate_w):
    def _A_ref(x, c_kv, w_q, w_uk, w_uv, w_o):
        B, Sq, M = x.shape[0], x.shape[1], x.shape[2]
        Sk = c_kv.shape[1]
        H, D = w_q.shape[1], w_q.shape[2]
        q = torch.einsum("bqm,mhd->bhqd", x, w_q)
        k = torch.einsum("bkc,chd->bhkd", c_kv, w_uk)
        v = torch.einsum("bkc,chd->bhkd", c_kv, w_uv)
        scores = torch.einsum("bhqd,bhkd->bhqk", q, k) * (D ** -0.5)
        off = Sk - Sq
        qi = torch.arange(Sq)[:, None]
        kj = torch.arange(Sk)[None, :]
        cmask = kj <= (qi + off)
        scores = torch.where(cmask[None, None], scores, -1e9)
        p = _softmax(scores, axis=-1)
        ctx = torch.einsum("bhqk,bhkd->bhqd", p, v)
        return torch.einsum("bhqd,hdm->bqm", ctx, w_o)

    def _B_ref(x, w_gate, w_up, w_down):
        g = _silu(x @ w_gate)
        u = x @ w_up
        return (g * u) @ w_down

    x = A_x
    g = _sigmoid((x * gate_w).sum(-1, keepdims=True))
    a = _A_ref(x, A_c_kv, A_w_q, A_w_uk, A_w_uv, A_w_o)
    b = _B_ref(x, B_w_gate, B_w_up, B_w_down)
    return g * a + (1 - g) * b
```

```python
import sys

NAME = "gated_mix__compressed_kv_cla__swiglu_ffn__decode"

QA_OFF = 0x0
M_OFF = 0x8000
L_OFF = 0xA000
OP_OFF = 0x100000
AP_OFF = 0x600000
BP_OFF = 0x700000
WS_BYTES = 0x800000

SC = 0.08838834764831845 * 1.4426950408889634


def f32bits(x):
    import struct
    return struct.unpack("<I", struct.pack("<f", x))[0]


class K:
    def __init__(self):
        self.lines = []
        self.nlab = 0

    def e(self, s):
        self.lines.append("    " + s)

    def c(self, s):
        self.lines.append("    ; " + s)

    def lab(self, l):
        self.lines.append(l + ":")

    def srd(self, d, b, nbytes):
        self.e(f"s_mov_b32 s{d}, s{b}")
        self.e(f"s_and_b32 s{d+1}, s{b+1}, 0xffff")
        self.e(f"s_mov_b32 s{d+2}, {nbytes:#x}")
        self.e(f"s_mov_b32 s{d+3}, 0x00020000")

    def text(self):
        return "\n".join(self.lines) + "\n"


def wave_reduce(k, op, v, tmp):
    for x in (1, 2, 4, 8, 16):
        k.e(f"ds_swizzle_b32 v{tmp}, v{v} offset:{(x << 10) | 0x1f:#x}")
        k.e("s_waitcnt lgkmcnt(0)")
        k.e(f"{op} v{v}, v{v}, v{tmp}")
    k.e(f"v_mov_b32 v{tmp}, v{v}")
    k.e("s_nop 1")
    k.e(f"v_permlane32_swap_b32 v{v}, v{tmp}")
    k.e(f"{op} v{v}, v{v}, v{tmp}")


def group_reduce16(k, op, v, tmp):
    k.e(f"ds_swizzle_b32 v{tmp}, v{v} offset:{(16 << 10) | 0x1f:#x}")
    k.e("s_waitcnt lgkmcnt(0)")
    k.e(f"{op} v{v}, v{v}, v{tmp}")
    k.e(f"v_mov_b32 v{tmp}, v{v}")
    k.e("s_nop 1")
    k.e(f"v_permlane32_swap_b32 v{v}, v{tmp}")
    k.e(f"{op} v{v}, v{v}, v{tmp}")


def kernel_header(k, name):
    k.lines.append(f".globl {name}")
    k.lines.append(".p2align 8")
    k.lines.append(f".type {name},@function")
    k.lab(name)


def kernel_desc(name, vgpr=256, sgpr=102, accum=256):
    return (
        f".amdhsa_kernel {name}\n"
        f"  .amdhsa_next_free_vgpr {vgpr}\n"
        f"  .amdhsa_next_free_sgpr {sgpr}\n"
        f"  .amdhsa_accum_offset {accum}\n"
        f"  .amdhsa_group_segment_fixed_size 0\n"
        f"  .amdhsa_kernarg_size 112\n"
        f"  .amdhsa_user_sgpr_count 2\n"
        f"  .amdhsa_user_sgpr_kernarg_segment_ptr 1\n"
        f"  .amdhsa_system_sgpr_workgroup_id_x 1\n"
        f".end_amdhsa_kernel\n"
    )


def gen_kernel_a():
    k = K()
    name = "ka_kernel"
    kernel_header(k, name)
    k.e("s_cmp_ge_u32 s2, 299")
    k.e("s_cbranch_scc1 KA_END")
    k.e("s_load_dwordx2 s[4:5], s[0:1], 0")
    k.e("s_load_dwordx2 s[6:7], s[0:1], 16")
    k.e("s_load_dwordx2 s[8:9], s[0:1], 24")
    k.e("s_load_dwordx2 s[10:11], s[0:1], 104")
    k.e("s_load_dwordx4 s[12:15], s[0:1], 56")
    k.e("s_load_dwordx2 s[16:17], s[0:1], 72")
    k.e("s_waitcnt lgkmcnt(0)")
    k.srd(20, 4, 1024)
    k.srd(32, 10, WS_BYTES)
    k.e("s_cmp_ge_u32 s2, 256")
    k.e("s_cbranch_scc1 KA_FFN")
    k.srd(24, 6, 4 << 20)
    k.srd(28, 8, 4 << 20)
    k.e("s_and_b32 s41, s2, 31")
    k.e("s_lshr_b32 s42, s2, 5")
    k.e("v_and_b32 v1, 15, v0")
    k.e("v_lshrrev_b32 v2, 4, v0")
    k.e("s_lshl_b32 s43, s41, 8")
    k.e("v_lshlrev_b32 v3, 18, v2")
    k.e("v_lshl_add_u32 v3, v1, 4, v3")
    k.e("v_add_u32 v3, s43, v3")
    k.e("v_lshlrev_b32 v4, 6, v2")
    for i in range(4):
        k.e(f"buffer_load_dwordx4 v[{10+4*i}:{13+4*i}], v4, s[20:23], 0 offen offset:{16*i}")
    for i in range(32):
        k.e(f"s_mov_b32 s{50+i}, {i*8192}")
    for i in range(32):
        k.e(f"buffer_load_dwordx4 v[{32+4*i}:{35+4*i}], v3, s[24:27], s{50+i} offen")
    k.e("v_and_b32 v5, 63, v0")
    k.e("v_lshrrev_b32 v6, 6, v0")
    k.e("v_and_b32 v7, 15, v5")
    k.e("v_lshrrev_b32 v8, 4, v5")
    k.e("s_lshl_b32 s44, s42, 6")
    k.e("v_lshl_add_u32 v9, v6, 4, v7")
    k.e("v_add_u32 v9, s44, v9")
    k.e("v_lshlrev_b32 v26, 13, v9")
    k.e("v_lshl_add_u32 v26, v8, 6, v26")
    k.e("v_add_u32 v26, s43, v26")
    for s in range(4):
        k.e(f"buffer_load_dwordx4 v[{168+4*s}:{171+4*s}], v26, s[28:31], 0 offen offset:{16*s}")
    for a in range(8):
        k.e(f"v_mov_b32 v{160+a}, 0")
    k.e("s_waitcnt vmcnt(36)")
    for i in range(32):
        xp = 10 + i // 2
        if i % 2 == 0:
            k.e(f"v_and_b32 v27, 0xffff, v{xp}")
            k.e(f"v_lshlrev_b32 v28, 16, v{xp}")
        else:
            k.e(f"v_lshrrev_b32 v27, 16, v{xp}")
            k.e(f"v_and_b32 v28, 0xffff0000, v{xp}")
        k.e(f"s_waitcnt vmcnt({35-i})")
        for d in range(4):
            k.e(f"v_dot2c_f32_bf16 v{160+2*d}, v{32+4*i+d}, v27")
            k.e(f"v_dot2c_f32_bf16 v{161+2*d}, v{32+4*i+d}, v28")
    k.e("v_lshlrev_b32 v29, 9, v2")
    k.e("v_lshl_add_u32 v29, v1, 5, v29")
    k.e("ds_write_b128 v29, v[160:163]")
    k.e("ds_write_b128 v29, v[164:167] offset:16")
    k.e("s_waitcnt lgkmcnt(0)")
    k.e("s_barrier")
    k.e("v_and_b32 v29, 127, v0")
    k.e("v_lshlrev_b32 v29, 2, v29")
    for r in range(16):
        k.e(f"ds_read_b32 v{32+r}, v29 offset:{512*r}")
    k.e("s_waitcnt lgkmcnt(0)")
    for r in range(1, 16):
        k.e(f"v_add_f32 v32, v32, v{32+r}")
    k.e("v_cvt_pk_bf16_f32 v32, v32, v32")
    k.e("v_lshrrev_b32 v29, 1, v29")
    k.e("v_add_u32 v29, 8192, v29")
    k.e("ds_write_b16 v29, v32")
    k.e("s_waitcnt lgkmcnt(0)")
    k.e("s_barrier")
    k.e("v_lshlrev_b32 v29, 6, v8")
    k.e("v_add_u32 v29, 8192, v29")
    for s in range(4):
        k.e(f"ds_read_b128 v[{32+4*s}:{35+4*s}], v29 offset:{16*s}")
    for a in range(4):
        k.e(f"v_mov_b32 v{184+a}, 0")
    k.e("s_nop 1")
    k.e("s_waitcnt vmcnt(0) lgkmcnt(0)")
    for s in range(4):
        k.e(f"v_mfma_f32_16x16x32_bf16 v[184:187], v[{168+4*s}:{171+4*s}], v[{32+4*s}:{35+4*s}], v[184:187]")
    k.e("s_nop 7")
    k.e("s_nop 1")
    k.e(f"s_mov_b32 s45, {f32bits(SC):#x}")
    for a in range(4):
        k.e(f"v_mul_f32 v{184+a}, s45, v{184+a}")
    k.e("v_cvt_pk_bf16_f32 v188, v184, v185")
    k.e("v_cvt_pk_bf16_f32 v189, v186, v187")
    k.e("s_lshl_b32 s46, s41, 10")
    k.e("s_lshl_b32 s47, s42, 7")
    k.e("s_add_u32 s46, s46, s47")
    k.e("v_lshlrev_b32 v29, 5, v6")
    k.e("v_lshl_add_u32 v29, v8, 3, v29")
    k.e("v_add_u32 v29, s46, v29")
    k.e("v_cmp_eq_u32 vcc, 0, v7")
    k.e("s_and_saveexec_b64 s[48:49], vcc")
    k.e("buffer_store_dwordx2 v[188:189], v29, s[32:35], 0 offen")
    k.e("s_waitcnt vmcnt(0)")
    k.e("s_endpgm")

    k.lab("KA_FFN")
    k.srd(24, 12, 512 * 1376 * 2)
    k.srd(28, 14, 512 * 1376 * 2)
    k.srd(36, 16, 1376 * 512 * 2)
    k.e("s_sub_u32 s41, s2, 256")
    k.e("v_and_b32 v1, 3, v0")
    k.e("v_lshrrev_b32 v2, 2, v0")
    k.e("s_movk_i32 s42, 22016")
    k.e("v_mul_lo_u32 v3, v2, s42")
    k.e("v_lshl_add_u32 v3, v1, 4, v3")
    k.e("s_lshl_b32 s43, s41, 6")
    k.e("v_add_u32 v3, s43, v3")
    k.e("v_lshlrev_b32 v4, 4, v2")
    k.e("buffer_load_dwordx4 v[10:13], v4, s[20:23], 0 offen")
    for i in range(8):
        k.e(f"s_mov_b32 s{50+i}, {i*2752}")
    for i in range(8):
        k.e(f"buffer_load_dwordx4 v[{32+4*i}:{35+4*i}], v3, s[24:27], s{50+i} offen")
    for i in range(8):
        k.e(f"buffer_load_dwordx4 v[{64+4*i}:{67+4*i}], v3, s[28:31], s{50+i} offen")
    k.e("s_lshl_b32 s44, s41, 15")
    k.e("v_lshlrev_b32 v5, 2, v0")
    k.e("v_add_u32 v5, s44, v5")
    for i in range(32):
        if i < 4:
            k.e(f"buffer_load_dword v{128+i}, v5, s[36:39], 0 offen offset:{i*1024}")
        else:
            if i % 4 == 0:
                k.e("v_add_u32 v5, 4096, v5")
            k.e(f"buffer_load_dword v{128+i}, v5, s[36:39], 0 offen offset:{(i%4)*1024}")
    for a in range(16):
        k.e(f"v_mov_b32 v{100+a}, 0")
    k.e("s_waitcnt vmcnt(48)")
    for i in range(8):
        xp = 10 + i // 2
        if i % 2 == 0:
            k.e(f"v_and_b32 v27, 0xffff, v{xp}")
            k.e(f"v_lshlrev_b32 v28, 16, v{xp}")
        else:
            k.e(f"v_lshrrev_b32 v27, 16, v{xp}")
            k.e(f"v_and_b32 v28, 0xffff0000, v{xp}")
        k.e(f"s_waitcnt vmcnt({32+8+7-i})")
        for d in range(4):
            k.e(f"v_dot2c_f32_bf16 v{100+2*d}, v{32+4*i+d}, v27")
            k.e(f"v_dot2c_f32_bf16 v{101+2*d}, v{32+4*i+d}, v28")
    for i in range(8):
        xp = 10 + i // 2
        if i % 2 == 0:
            k.e(f"v_and_b32 v27, 0xffff, v{xp}")
            k.e(f"v_lshlrev_b32 v28, 16, v{xp}")
        else:
            k.e(f"v_lshrrev_b32 v27, 16, v{xp}")
            k.e(f"v_and_b32 v28, 0xffff0000, v{xp}")
        k.e(f"s_waitcnt vmcnt({32+7-i})")
        for d in range(4):
            k.e(f"v_dot2c_f32_bf16 v{108+2*d}, v{64+4*i+d}, v27")
            k.e(f"v_dot2c_f32_bf16 v{109+2*d}, v{64+4*i+d}, v28")
    k.e("v_lshlrev_b32 v29, 7, v2")
    k.e("v_lshl_add_u32 v29, v1, 5, v29")
    k.e("ds_write_b128 v29, v[100:103]")
    k.e("ds_write_b128 v29, v[104:107] offset:16")
    k.e("ds_write_b128 v29, v[108:111] offset:8192")
    k.e("ds_write_b128 v29, v[112:115] offset:8208")
    k.e("s_waitcnt lgkmcnt(0)")
    k.e("s_barrier")
    k.e("v_and_b32 v29, 31, v0")
    k.e("v_lshlrev_b32 v29, 2, v29")
    k.e("v_bfe_u32 v30, v0, 5, 1")
    k.e("v_lshl_add_u32 v29, v30, 13, v29")
    k.e("v_lshrrev_b32 v30, 6, v0")
    k.e("v_lshl_add_u32 v29, v30, 11, v29")
    for r in range(16):
        k.e(f"ds_read_b32 v{64+r}, v29 offset:{128*r}")
    k.e("s_waitcnt lgkmcnt(0)")
    for r in range(1, 16):
        k.e(f"v_add_f32 v64, v64, v{64+r}")
    k.e("v_lshlrev_b32 v29, 2, v0")
    k.e("v_add_u32 v29, 16384, v29")
    k.e("ds_write_b32 v29, v64")
    k.e("s_waitcnt lgkmcnt(0)")
    k.e("s_barrier")
    k.e("v_and_b32 v29, 31, v0")
    k.e("v_lshlrev_b32 v29, 2, v29")
    k.e("v_add_u32 v29, 16384, v29")
    for p in range(4):
        k.e(f"ds_read_b32 v{64+p}, v29 offset:{256*p}")
        k.e(f"ds_read_b32 v{68+p}, v29 offset:{256*p+128}")
    k.e("s_waitcnt lgkmcnt(0)")
    for p in range(1, 4):
        k.e(f"v_add_f32 v64, v64, v{64+p}")
        k.e(f"v_add_f32 v68, v68, v{68+p}")
    k.e("v_cvt_pk_bf16_f32 v64, v64, v68")
    k.e("v_lshlrev_b32 v65, 16, v64")
    k.e("v_and_b32 v66, 0xffff0000, v64")
    k.e(f"v_mul_f32 v67, {f32bits(-1.4426950408889634):#x}, v65")
    k.e("v_exp_f32 v67, v67")
    k.e("s_nop 0")
    k.e("v_add_f32 v67, 1.0, v67")
    k.e("v_rcp_f32 v67, v67")
    k.e("s_nop 0")
    k.e("v_mul_f32 v67, v65, v67")
    k.e("v_cvt_pk_bf16_f32 v67, v67, v67")
    k.e("v_lshlrev_b32 v67, 16, v67")
    k.e("v_mul_f32 v67, v67, v66")
    k.e("v_cvt_pk_bf16_f32 v67, v67, v67")
    k.e("v_and_b32 v67, 0xffff, v67")
    k.e("v_and_b32 v29, 31, v0")
    k.e("v_lshlrev_b32 v29, 2, v29")
    k.e("v_add_u32 v29, 20480, v29")
    k.e("ds_write_b32 v29, v67")
    k.e("s_waitcnt lgkmcnt(0)")
    k.e("s_barrier")
    k.e("v_mov_b32 v29, 20480")
    for p in range(8):
        k.e(f"ds_read_b128 v[{64+4*p}:{67+4*p}], v29 offset:{16*p}")
    k.e("v_mov_b32 v100, 0")
    k.e("v_mov_b32 v101, 0")
    k.e("s_waitcnt vmcnt(0) lgkmcnt(0)")
    for i in range(32):
        k.e(f"v_lshlrev_b32 v30, 16, v{64+i}")
        k.e(f"v_dot2c_f32_bf16 v100, v{128+i}, v{64+i}")
        k.e(f"v_dot2c_f32_bf16 v101, v{128+i}, v30")
    k.e("s_lshl_b32 s44, s41, 11")
    k.e(f"s_add_u32 s44, s44, {BP_OFF:#x}")
    k.e("v_lshlrev_b32 v29, 3, v0")
    k.e("v_add_u32 v29, s44, v29")
    k.e("buffer_store_dwordx2 v[100:101], v29, s[32:35], 0 offen")
    k.e("s_waitcnt vmcnt(0)")
    k.lab("KA_END")
    k.e("s_endpgm")
    return name, k


PITCH = 1040
TILE_BYTES = 128 * PITCH
RED_OFF = TILE_BYTES
RED2_OFF = RED_OFF + 256
PX_OFF = RED2_OFF + 256
KB_LDS = PX_OFF + 4096


def gen_kernel_b():
    k = K()
    name = "kb_kernel"
    kernel_header(k, name)
    k.e("s_cmp_ge_u32 s2, 256")
    k.e("s_cbranch_scc1 KB_END")
    k.e("s_load_dwordx2 s[4:5], s[0:1], 8")
    k.e("s_load_dwordx2 s[10:11], s[0:1], 104")
    k.e("s_waitcnt lgkmcnt(0)")
    k.srd(20, 4, 8 << 20)
    k.srd(32, 10, WS_BYTES)
    k.e("s_and_b32 s40, s2, 7")
    k.e("s_lshr_b32 s41, s2, 3")
    k.e("s_and_b32 s42, s41, 3")
    k.e("s_lshr_b32 s41, s41, 2")
    k.e("s_lshl_b32 s41, s41, 3")
    k.e("s_add_u32 s41, s41, s40")
    k.e("v_and_b32 v1, 63, v0")
    k.e("v_lshrrev_b32 v2, 6, v0")
    k.e("v_and_b32 v3, 15, v1")
    k.e("v_lshrrev_b32 v4, 4, v1")
    k.e("s_nop 0")
    k.e("v_readfirstlane_b32 s43, v2")
    k.e("s_nop 3")
    k.e("s_lshl_b32 s44, s41, 17")
    k.e("s_lshl_b32 s45, s43, 15")
    k.e("s_add_u32 s44, s44, s45")
    k.e("v_lshlrev_b32 v5, 4, v1")
    k.e("v_add_u32 v5, s44, v5")
    k.e(f"s_mul_i32 s45, s43, {32*PITCH}")
    k.e("s_mov_b32 m0, s45")
    for i in range(32):
        k.e("s_nop 0")
        k.e("buffer_load_dwordx4 v5, s[20:23], 0 offen lds")
        if i < 31:
            k.e("v_add_u32 v5, 1024, v5")
            k.e(f"s_add_u32 m0, m0, {PITCH}")
    k.e("v_and_b32 v6, 7, v1")
    k.e("s_lshl_b32 s45, s42, 13")
    k.e("v_lshlrev_b32 v6, 10, v6")
    k.e("v_lshl_add_u32 v6, v4, 4, v6")
    k.e("v_add_u32 v6, s45, v6")
    for s in range(16):
        k.e(f"buffer_load_dwordx4 v[{16+4*s}:{19+4*s}], v6, s[32:35], 0 offen offset:{64*s}")
    k.e("s_waitcnt vmcnt(0)")
    k.e("s_barrier")
    k.e(f"s_mul_i32 s45, s43, {32*PITCH}")
    k.e(f"s_movk_i32 s46, {PITCH}")
    k.e("v_mul_lo_u32 v7, v3, s46")
    k.e("v_lshl_add_u32 v7, v4, 4, v7")
    k.e("v_add_u32 v7, s45, v7")
    for t in range(2):
        for s in range(16):
            k.e(f"ds_read_b128 v[{80+64*t+4*s}:{83+64*t+4*s}], v7 offset:{t*16*PITCH+64*s}")
    for a in range(8):
        k.e(f"v_mov_b32 v{208+a}, 0")
    k.e("s_nop 1")
    for t in range(2):
        for s in range(16):
            n = t * 16 + s
            k.e(f"s_waitcnt lgkmcnt({min(15, 31-n)})")
            k.e(f"v_mfma_f32_16x16x32_bf16 v[{208+4*t}:{211+4*t}], v[{80+64*t+4*s}:{83+64*t+4*s}], v[{16+4*s}:{19+4*s}], v[{208+4*t}:{211+4*t}]")
    k.e("s_nop 7")
    k.e("s_nop 1")
    k.e("v_max_f32 v216, v208, v209")
    k.e("v_max3_f32 v216, v216, v210, v211")
    k.e("v_max3_f32 v216, v216, v212, v213")
    k.e("v_max3_f32 v216, v216, v214, v215")
    group_reduce16(k, "v_max_f32", 216, 217)
    k.e("s_lshl_b32 s45, s43, 6")
    k.e(f"s_add_u32 s45, s45, {RED_OFF}")
    k.e("v_lshlrev_b32 v218, 2, v3")
    k.e("v_add_u32 v219, s45, v218")
    k.e("ds_write_b32 v219, v216")
    k.e("s_waitcnt lgkmcnt(0)")
    k.e("s_barrier")
    k.e(f"v_add_u32 v219, {RED_OFF}, v218")
    for w in range(4):
        k.e(f"ds_read_b32 v{220+w}, v219 offset:{64*w}")
    k.e("s_waitcnt lgkmcnt(0)")
    k.e("v_max_f32 v216, v220, v221")
    k.e("v_max3_f32 v216, v216, v222, v223")
    for a in range(8):
        k.e(f"v_sub_f32 v{208+a}, v{208+a}, v216")
        k.e(f"v_exp_f32 v{208+a}, v{208+a}")
    k.e("s_nop 0")
    k.e("v_add_f32 v217, v208, v209")
    for a in range(2, 8):
        k.e(f"v_add_f32 v217, v217, v{208+a}")
    group_reduce16(k, "v_add_f32", 217, 220)
    k.e("s_lshl_b32 s45, s43, 6")
    k.e(f"s_add_u32 s45, s45, {RED2_OFF}")
    k.e("v_add_u32 v219, s45, v218")
    k.e("ds_write_b32 v219, v217")
    k.e("v_cvt_pk_bf16_f32 v224, v208, v209")
    k.e("v_cvt_pk_bf16_f32 v225, v210, v211")
    k.e("v_cvt_pk_bf16_f32 v226, v212, v213")
    k.e("v_cvt_pk_bf16_f32 v227, v214, v215")
    k.e("s_lshl_b32 s45, s43, 10")
    k.e(f"s_add_u32 s45, s45, {PX_OFF}")
    k.e("v_lshlrev_b32 v219, 4, v1")
    k.e("v_add_u32 v219, s45, v219")
    k.e("ds_write_b128 v219, v[224:227]")
    k.e("s_waitcnt lgkmcnt(0)")
    k.e("s_barrier")
    k.e("v_lshlrev_b32 v219, 4, v1")
    k.e(f"v_add_u32 v219, {PX_OFF}, v219")
    for kb in range(4):
        k.e(f"ds_read_b128 v[{224+4*kb}:{227+4*kb}], v219 offset:{1024*kb}")
    k.e(f"v_add_u32 v219, {RED2_OFF}, v218")
    for w in range(4):
        k.e(f"ds_read_b32 v{240+w}, v219 offset:{64*w}")
    k.e("v_lshrrev_b32 v8, 2, v3")
    k.e("v_lshl_add_u32 v8, v4, 2, v8")
    k.e("v_mul_lo_u32 v8, v8, s46")
    k.e("v_and_b32 v9, 3, v1")
    k.e("v_lshl_add_u32 v8, v9, 3, v8")
    k.e("s_lshl_b32 s45, s43, 8")
    k.e("v_add_u32 v8, s45, v8")
    k.e(f"v_add_u32 v9, {64*PITCH}, v8")
    for a in range(32):
        k.e(f"v_mov_b32 v{80+a}, 0")
    k.e("s_waitcnt lgkmcnt(0)")
    k.e("v_add_f32 v240, v240, v241")
    k.e("v_add_f32 v242, v242, v243")
    k.e("v_add_f32 v240, v240, v242")
    for ct in range(8):
        for kb in range(4):
            vb = 8 if kb < 2 else 9
            off = (kb % 2) * 32 * PITCH + ct * 32
            k.e(f"ds_read_b64_tr_b16 v[{112+4*kb}:{113+4*kb}], v{vb} offset:{off}")
            k.e(f"ds_read_b64_tr_b16 v[{114+4*kb}:{115+4*kb}], v{vb} offset:{off+16*PITCH}")
        k.e("s_waitcnt lgkmcnt(0)")
        for kb in range(4):
            k.e(f"v_mfma_f32_16x16x32_bf16 v[{80+4*ct}:{83+4*ct}], v[{224+4*kb}:{227+4*kb}], v[{112+4*kb}:{115+4*kb}], v[{80+4*ct}:{83+4*ct}]")
    k.e("s_nop 7")
    k.e("s_nop 1")
    k.e("s_lshl_b32 s45, s41, 16")
    k.e("s_lshl_b32 s47, s42, 14")
    k.e("s_add_u32 s45, s45, s47")
    k.e("s_lshl_b32 s47, s43, 9")
    k.e("s_add_u32 s45, s45, s47")
    k.e(f"s_add_u32 s45, s45, {OP_OFF:#x}")
    k.e("v_lshlrev_b32 v10, 13, v4")
    k.e("v_lshl_add_u32 v10, v3, 2, v10")
    k.e("v_add_u32 v10, s45, v10")
    k.e("v_cmp_gt_u32 vcc, 32, v1")
    k.e("s_and_saveexec_b64 s[48:49], vcc")
    for ct in range(8):
        for r in range(4):
            k.e(f"s_movk_i32 s50, {r*2048}")
            k.e(f"buffer_store_dword v{80+4*ct+r}, v10, s[32:35], s50 offen offset:{64*ct}")
    k.e("s_mov_b64 exec, s[48:49]")
    k.e("v_cmp_gt_u32 vcc, 8, v0")
    k.e("s_and_saveexec_b64 s[48:49], vcc")
    k.e("s_lshl_b32 s45, s42, 11")
    k.e("s_lshl_b32 s47, s41, 2")
    k.e("s_add_u32 s45, s45, s47")
    k.e("v_lshlrev_b32 v10, 8, v0")
    k.e("v_add_u32 v10, s45, v10")
    k.e(f"v_add_u32 v11, {M_OFF:#x}, v10")
    k.e("buffer_store_dword v216, v11, s[32:35], 0 offen")
    k.e(f"v_add_u32 v11, {L_OFF:#x}, v10")
    k.e("buffer_store_dword v240, v11, s[32:35], 0 offen")
    k.e("s_waitcnt vmcnt(0)")
    k.lab("KB_END")
    k.e("s_endpgm")
    return name, k


def gen_kernel_c():
    k = K()
    name = "kc_kernel"
    kernel_header(k, name)
    k.e("s_cmp_ge_u32 s2, 256")
    k.e("s_cbranch_scc1 KC_END")
    k.e("s_load_dwordx2 s[4:5], s[0:1], 32")
    k.e("s_load_dwordx2 s[6:7], s[0:1], 40")
    k.e("s_load_dwordx2 s[10:11], s[0:1], 104")
    k.e("s_waitcnt lgkmcnt(0)")
    k.srd(20, 4, 4 << 20)
    k.srd(24, 6, 4 << 20)
    k.srd(32, 10, WS_BYTES)
    k.e("s_and_b32 s41, s2, 31")
    k.e("s_lshr_b32 s42, s2, 5")
    k.e("v_and_b32 v1, 63, v0")
    k.e("v_lshrrev_b32 v2, 6, v0")
    k.e("v_and_b32 v3, 15, v0")
    k.e("v_lshrrev_b32 v4, 4, v0")
    k.e("s_lshl_b32 s43, s41, 8")
    k.e("v_lshlrev_b32 v5, 2, v1")
    k.e("v_add_u32 v5, s43, v5")
    k.e(f"v_add_u32 v6, {M_OFF:#x}, v5")
    k.e("buffer_load_dword v10, v6, s[32:35], 0 offen")
    k.e(f"v_add_u32 v6, {L_OFF:#x}, v5")
    k.e("buffer_load_dword v11, v6, s[32:35], 0 offen")
    k.e("s_lshl_b32 s43, s41, 11")
    k.e("s_lshl_b32 s44, s42, 8")
    k.e("s_add_u32 s43, s43, s44")
    k.e(f"s_add_u32 s43, s43, {OP_OFF:#x}")
    k.e("v_lshlrev_b32 v6, 18, v4")
    k.e("v_lshl_add_u32 v6, v3, 4, v6")
    k.e("v_add_u32 v6, s43, v6")
    k.e("s_mov_b32 s50, 0x10000")
    k.e("s_mov_b32 s51, 0x20000")
    k.e("s_mov_b32 s52, 0x30000")
    k.e("buffer_load_dwordx4 v[12:15], v6, s[32:35], 0 offen")
    k.e("buffer_load_dwordx4 v[16:19], v6, s[32:35], s50 offen")
    k.e("buffer_load_dwordx4 v[20:23], v6, s[32:35], s51 offen")
    k.e("buffer_load_dwordx4 v[24:27], v6, s[32:35], s52 offen")
    k.e("s_lshl_b32 s43, s42, 19")
    k.e("s_lshl_b32 s44, s41, 8")
    k.e("s_add_u32 s43, s43, s44")
    k.e("v_lshlrev_b32 v6, 15, v4")
    k.e("v_lshl_add_u32 v6, v3, 4, v6")
    k.e("v_add_u32 v6, s43, v6")
    k.e("s_movk_i32 s50, 8192")
    k.e("s_movk_i32 s51, 16384")
    k.e("s_movk_i32 s52, 24576")
    k.e("buffer_load_dwordx4 v[28:31], v6, s[20:23], 0 offen")
    k.e("buffer_load_dwordx4 v[32:35], v6, s[20:23], s50 offen")
    k.e("buffer_load_dwordx4 v[36:39], v6, s[20:23], s51 offen")
    k.e("buffer_load_dwordx4 v[40:43], v6, s[20:23], s52 offen")
    k.e("s_lshl_b32 s43, s41, 17")
    k.e("v_lshlrev_b32 v6, 15, v2")
    k.e("v_lshl_add_u32 v6, v1, 4, v6")
    k.e("v_add_u32 v6, s43, v6")
    for i in range(32):
        if i % 4 == 0 and i:
            k.e("v_add_u32 v6, 4096, v6")
        k.e(f"buffer_load_dwordx4 v[{64+4*i}:{67+4*i}], v6, s[24:27], 0 offen offset:{(i%4)*1024}")
    k.e("s_waitcnt vmcnt(40)")
    k.e("v_mov_b32 v44, v10")
    wave_reduce(k, "v_max_f32", 44, 45)
    k.e("v_sub_f32 v10, v10, v44")
    k.e("v_exp_f32 v10, v10")
    k.e("s_nop 0")
    k.e("v_mul_f32 v44, v10, v11")
    wave_reduce(k, "v_add_f32", 44, 45)
    k.e("v_rcp_f32 v44, v44")
    k.e("s_nop 0")
    k.e("v_mul_f32 v10, v10, v44")
    k.e("v_lshlrev_b32 v45, 4, v4")
    for i in range(4):
        k.e(f"v_add_u32 v46, {4*i}, v45")
        k.e(f"ds_bpermute_b32 v{48+i}, v46, v10")
    k.e("s_waitcnt vmcnt(36) lgkmcnt(0)")
    for a in range(4):
        k.e(f"v_mul_f32 v{52+a}, v48, v{12+a}")
    for i in range(1, 4):
        for a in range(4):
            k.e(f"v_fmac_f32 v{52+a}, v{48+i}, v{12+4*i+a}")
    k.e("v_lshlrev_b32 v45, 8, v4")
    k.e("v_lshl_add_u32 v45, v3, 4, v45")
    k.e("ds_write_b128 v45, v[52:55]")
    k.e("s_waitcnt lgkmcnt(0)")
    k.e("s_barrier")
    k.e("v_lshlrev_b32 v45, 2, v1")
    for r in range(16):
        k.e(f"ds_read_b32 v{192+r}, v45 offset:{256*r}")
    k.e("s_waitcnt lgkmcnt(0)")
    for r in range(1, 16):
        k.e(f"v_add_f32 v192, v192, v{192+r}")
    k.e("v_add_u32 v45, 4096, v45")
    k.e("ds_write_b32 v45, v192")
    k.e("s_waitcnt lgkmcnt(0)")
    k.e("s_barrier")
    k.e("v_lshlrev_b32 v45, 4, v4")
    k.e("v_add_u32 v45, 4096, v45")
    k.e("ds_read_b128 v[192:195], v45")
    for a in range(8):
        k.e(f"v_mov_b32 v{52+a}, 0")
    k.e("s_waitcnt vmcnt(32) lgkmcnt(0)")
    for i in range(4):
        for d in range(4):
            k.e(f"v_lshlrev_b32 v46, 16, v{28+4*i+d}")
            k.e(f"v_fmac_f32 v{52+2*d}, v{192+i}, v46")
            k.e(f"v_and_b32 v46, 0xffff0000, v{28+4*i+d}")
            k.e(f"v_fmac_f32 v{53+2*d}, v{192+i}, v46")
    k.e("v_lshlrev_b32 v45, 9, v4")
    k.e("v_lshl_add_u32 v45, v3, 5, v45")
    k.e("v_add_u32 v45, 8192, v45")
    k.e("ds_write_b128 v45, v[52:55]")
    k.e("ds_write_b128 v45, v[56:59] offset:16")
    k.e("s_waitcnt lgkmcnt(0)")
    k.e("s_barrier")
    k.e("v_and_b32 v45, 127, v0")
    k.e("v_lshlrev_b32 v45, 2, v45")
    k.e("v_add_u32 v46, 8192, v45")
    for r in range(16):
        k.e(f"ds_read_b32 v{192+r}, v46 offset:{512*r}")
    k.e("s_waitcnt lgkmcnt(0)")
    for r in range(1, 16):
        k.e(f"v_add_f32 v192, v192, v{192+r}")
    k.e("v_cvt_pk_bf16_f32 v192, v192, v192")
    k.e("v_and_b32 v192, 0xffff, v192")
    k.e("v_add_u32 v46, 16384, v45")
    k.e("ds_write_b32 v46, v192")
    k.e("s_waitcnt lgkmcnt(0)")
    k.e("s_barrier")
    k.e("v_lshlrev_b32 v45, 7, v2")
    k.e("v_add_u32 v45, 16384, v45")
    for p in range(8):
        k.e(f"ds_read_b128 v[{192+4*p}:{195+4*p}], v45 offset:{16*p}")
    for a in range(8):
        k.e(f"v_mov_b32 v{52+a}, 0")
    k.e("s_waitcnt lgkmcnt(0)")
    for i in range(32):
        k.e(f"s_waitcnt vmcnt({31-i})")
        k.e(f"v_lshlrev_b32 v46, 16, v{192+i}")
        for d in range(4):
            k.e(f"v_dot2c_f32_bf16 v{52+2*d}, v{64+4*i+d}, v{192+i}")
            k.e(f"v_dot2c_f32_bf16 v{53+2*d}, v{64+4*i+d}, v46")
    k.e("v_lshlrev_b32 v45, 11, v2")
    k.e("v_lshl_add_u32 v45, v1, 5, v45")
    k.e("v_add_u32 v45, 20480, v45")
    k.e("ds_write_b128 v45, v[52:55]")
    k.e("ds_write_b128 v45, v[56:59] offset:16")
    k.e("s_waitcnt lgkmcnt(0)")
    k.e("s_barrier")
    k.e("v_lshlrev_b32 v45, 3, v0")
    k.e("v_add_u32 v45, 20480, v45")
    for w in range(4):
        k.e(f"ds_read_b64 v[{52+2*w}:{53+2*w}], v45 offset:{2048*w}")
    k.e("s_waitcnt lgkmcnt(0)")
    for w in range(1, 4):
        k.e(f"v_add_f32 v52, v52, v{52+2*w}")
        k.e(f"v_add_f32 v53, v53, v{53+2*w}")
    k.e("s_lshl_b32 s43, s2, 11")
    k.e(f"s_add_u32 s43, s43, {AP_OFF:#x}")
    k.e("v_lshlrev_b32 v45, 3, v0")
    k.e("v_add_u32 v45, s43, v45")
    k.e("buffer_store_dwordx2 v[52:53], v45, s[32:35], 0 offen")
    k.e("s_waitcnt vmcnt(0)")
    k.lab("KC_END")
    k.e("s_endpgm")
    return name, k


def gen_kernel_d():
    k = K()
    name = "kd_kernel"
    kernel_header(k, name)
    k.e("s_cmp_ge_u32 s2, 16")
    k.e("s_cbranch_scc1 KD_END")
    k.e("s_load_dwordx2 s[4:5], s[0:1], 0")
    k.e("s_load_dwordx2 s[6:7], s[0:1], 80")
    k.e("s_load_dwordx2 s[8:9], s[0:1], 88")
    k.e("s_load_dwordx2 s[10:11], s[0:1], 104")
    k.e("s_waitcnt lgkmcnt(0)")
    k.srd(20, 4, 1024)
    k.srd(24, 6, 1024)
    k.srd(28, 8, 1024)
    k.srd(32, 10, WS_BYTES)
    k.e("v_and_b32 v1, 7, v0")
    k.e("v_lshrrev_b32 v2, 3, v0")
    k.e("v_lshlrev_b32 v3, 2, v0")
    k.e("buffer_load_dword v4, v3, s[20:23], 0 offen")
    k.e("buffer_load_dword v5, v3, s[24:27], 0 offen")
    k.e("s_lshl_b32 s43, s2, 7")
    k.e(f"s_add_u32 s43, s43, {AP_OFF:#x}")
    k.e("v_lshlrev_b32 v6, 11, v2")
    k.e("v_lshl_add_u32 v6, v1, 4, v6")
    k.e("v_add_u32 v6, s43, v6")
    for i in range(8):
        k.e(f"s_mov_b32 s{50+i}, {i*65536}")
    for i in range(8):
        k.e(f"buffer_load_dwordx4 v[{16+4*i}:{19+4*i}], v6, s[32:35], s{50+i} offen")
    k.e(f"v_add_u32 v7, {BP_OFF-AP_OFF:#x}, v6")
    k.e("buffer_load_dwordx4 v[48:51], v7, s[32:35], 0 offen")
    for a in range(4):
        k.e(f"v_mov_b32 v{52+a}, 0")
    k.e("v_cmp_gt_u32 vcc, 11, v2")
    k.e("s_and_saveexec_b64 s[48:49], vcc")
    k.e("buffer_load_dwordx4 v[52:55], v7, s[32:35], s51 offen")
    k.e("s_mov_b64 exec, s[48:49]")
    k.e("s_waitcnt vmcnt(0)")
    for i in range(1, 8):
        for a in range(4):
            k.e(f"v_add_f32 v{16+a}, v{16+a}, v{16+4*i+a}")
    for a in range(4):
        k.e(f"v_add_f32 v{48+a}, v{48+a}, v{52+a}")
    k.e("v_lshlrev_b32 v8, 16, v4")
    k.e("v_lshlrev_b32 v9, 16, v5")
    k.e("v_mul_f32 v8, v8, v9")
    k.e("v_and_b32 v10, 0xffff0000, v4")
    k.e("v_and_b32 v11, 0xffff0000, v5")
    k.e("v_mul_f32 v10, v10, v11")
    k.e("v_cvt_pk_bf16_f32 v8, v8, v10")
    k.e("v_lshlrev_b32 v9, 16, v8")
    k.e("v_and_b32 v8, 0xffff0000, v8")
    k.e("v_add_f32 v8, v8, v9")
    wave_reduce(k, "v_add_f32", 8, 9)
    k.e("v_lshlrev_b32 v12, 7, v2")
    k.e("v_lshl_add_u32 v12, v1, 4, v12")
    k.e("ds_write_b128 v12, v[16:19]")
    k.e("ds_write_b128 v12, v[48:51] offset:4096")
    k.e("v_lshrrev_b32 v13, 6, v0")
    k.e("v_lshlrev_b32 v13, 2, v13")
    k.e("ds_write_b32 v13, v8 offset:8192")
    k.e("s_waitcnt lgkmcnt(0)")
    k.e("s_barrier")
    k.e("v_cmp_gt_u32 vcc, 32, v0")
    k.e("s_and_saveexec_b64 s[48:49], vcc")
    k.e("s_cbranch_execz KD_END")
    k.e("v_lshlrev_b32 v12, 2, v0")
    for r in range(32):
        k.e(f"ds_read_b32 v{16+r}, v12 offset:{128*r}")
    for r in range(32):
        k.e(f"ds_read_b32 v{48+r}, v12 offset:{4096+128*r}")
    k.e("v_mov_b32 v13, 8192")
    k.e("ds_read_b128 v[8:11], v13")
    k.e("s_waitcnt lgkmcnt(0)")
    for r in range(1, 32):
        k.e(f"v_add_f32 v16, v16, v{16+r}")
        k.e(f"v_add_f32 v48, v48, v{48+r}")
    k.e("v_add_f32 v8, v8, v9")
    k.e("v_add_f32 v10, v10, v11")
    k.e("v_add_f32 v8, v8, v10")
    k.e("v_cvt_pk_bf16_f32 v8, v8, v8")
    k.e("v_lshlrev_b32 v8, 16, v8")
    k.e(f"v_mul_f32 v8, {f32bits(-1.4426950408889634):#x}, v8")
    k.e("v_exp_f32 v8, v8")
    k.e("s_nop 0")
    k.e("v_add_f32 v8, 1.0, v8")
    k.e("v_rcp_f32 v8, v8")
    k.e("s_nop 0")
    k.e("v_cvt_pk_bf16_f32 v8, v8, v8")
    k.e("v_lshlrev_b32 v8, 16, v8")
    k.e("v_sub_f32 v9, 1.0, v8")
    k.e("v_cvt_pk_bf16_f32 v9, v9, v9")
    k.e("v_lshlrev_b32 v9, 16, v9")
    k.e("v_cvt_pk_bf16_f32 v16, v16, v48")
    k.e("v_lshlrev_b32 v17, 16, v16")
    k.e("v_and_b32 v18, 0xffff0000, v16")
    k.e("v_mul_f32 v17, v8, v17")
    k.e("v_mul_f32 v18, v9, v18")
    k.e("v_cvt_pk_bf16_f32 v17, v17, v18")
    k.e("v_lshlrev_b32 v18, 16, v17")
    k.e("v_and_b32 v17, 0xffff0000, v17")
    k.e("v_add_f32 v17, v17, v18")
    k.e("v_cvt_pk_bf16_f32 v17, v17, v17")
    k.e("s_lshl_b32 s43, s2, 6")
    k.e("v_lshlrev_b32 v12, 1, v0")
    k.e("v_add_u32 v12, s43, v12")
    k.e("buffer_store_short v17, v12, s[28:31], 0 offen")
    k.e("s_waitcnt vmcnt(0)")
    k.lab("KD_END")
    k.e("s_endpgm")
    return name, k


def main():
    out = []
    out.append("; @launch kernel=ka_kernel grid=(299,1,1) block=(256,1,1) lds=24576")
    out.append(f"; @launch kernel=kb_kernel grid=(256,1,1) block=(256,1,1) lds={KB_LDS}")
    out.append("; @launch kernel=kc_kernel grid=(256,1,1) block=(256,1,1) lds=28672")
    out.append("; @launch kernel=kd_kernel grid=(16,1,1) block=(256,1,1) lds=8448")
    out.append('.amdgcn_target "amdgcn-amd-amdhsa--gfx950"')
    out.append(".text")
    names = []
    for g in (gen_kernel_a, gen_kernel_b, gen_kernel_c, gen_kernel_d):
        n, k = g()
        names.append(n)
        out.append(k.text())
    out.append('.section .rodata,"a"')
    out.append(".p2align 6")
    for n in names:
        out.append(kernel_desc(n))
        out.append(".p2align 6")
    open(sys.argv[1] if len(sys.argv) > 1 else f"cdna_kernels/{NAME}.s", "w").write("\n".join(out))


if __name__ == "__main__":
    main()
```

```python
import sys
from gen import K, f32bits, wave_reduce, group_reduce16, kernel_header, kernel_desc, NAME, SC

QP_OFF = 0x0
QA_OFF = 0x20000
M_OFF = 0x28000
L_OFF = 0x2C000
CP_OFF = 0x30000
AP_OFF = 0x50000
GP_OFF = 0x60000
UP_OFF = 0x68000
BP_OFF = 0x70000
OP_OFF = 0x100000
WS_BYTES = 0x800000


def xsplit(k, xp, odd):
    if not odd:
        k.e(f"v_and_b32 v27, 0xffff, v{xp}")
        k.e(f"v_lshlrev_b32 v28, 16, v{xp}")
    else:
        k.e(f"v_lshrrev_b32 v27, 16, v{xp}")
        k.e(f"v_and_b32 v28, 0xffff0000, v{xp}")


def gen_k1():
    k = K(); name = "k1_kernel"; kernel_header(k, name)
    k.e("s_cmp_ge_u32 s2, 428")
    k.e("s_cbranch_scc1 K1_END")
    k.e("s_load_dwordx2 s[4:5], s[0:1], 0")
    k.e("s_load_dwordx2 s[6:7], s[0:1], 16")
    k.e("s_load_dwordx2 s[10:11], s[0:1], 104")
    k.e("s_load_dwordx4 s[12:15], s[0:1], 56")
    k.e("s_waitcnt lgkmcnt(0)")
    k.srd(20, 4, 1024)
    k.srd(32, 10, WS_BYTES)
    k.e("s_cmp_ge_u32 s2, 256")
    k.e("s_cbranch_scc1 K1_FFN")
    k.srd(24, 6, 4 << 20)
    k.e("s_lshr_b32 s41, s2, 3")
    k.e("s_and_b32 s42, s2, 7")
    k.e("v_and_b32 v1, 15, v0")
    k.e("v_lshrrev_b32 v2, 4, v0")
    k.e("s_lshl_b32 s43, s42, 19")
    k.e("s_lshl_b32 s44, s41, 8")
    k.e("s_add_u32 s43, s43, s44")
    k.e("v_lshlrev_b32 v3, 15, v2")
    k.e("v_lshl_add_u32 v3, v1, 4, v3")
    k.e("v_add_u32 v3, s43, v3")
    k.e("s_lshl_b32 s44, s42, 7")
    k.e("v_lshlrev_b32 v4, 3, v2")
    k.e("v_add_u32 v4, s44, v4")
    k.e("buffer_load_dwordx2 v[10:11], v4, s[20:23], 0 offen")
    k.e("s_movk_i32 s50, 8192"); k.e("s_movk_i32 s51, 16384"); k.e("s_movk_i32 s52, 24576")
    k.e("buffer_load_dwordx4 v[32:35], v3, s[24:27], 0 offen")
    for i in range(1, 4):
        k.e(f"buffer_load_dwordx4 v[{32+4*i}:{35+4*i}], v3, s[24:27], s{49+i} offen")
    for a in range(8):
        k.e(f"v_mov_b32 v{60+a}, 0")
    for i in range(4):
        k.e(f"s_waitcnt vmcnt({3-i})")
        xsplit(k, 10 + i // 2, i % 2)
        for d in range(4):
            k.e(f"v_dot2c_f32_bf16 v{60+2*d}, v{32+4*i+d}, v27")
            k.e(f"v_dot2c_f32_bf16 v{61+2*d}, v{32+4*i+d}, v28")
    k.e("v_lshlrev_b32 v29, 9, v2")
    k.e("v_lshl_add_u32 v29, v1, 5, v29")
    k.e("ds_write_b128 v29, v[60:63]")
    k.e("ds_write_b128 v29, v[64:67] offset:16")
    k.e("s_waitcnt lgkmcnt(0)")
    k.e("s_barrier")
    k.e("v_cmp_gt_u32 vcc, 128, v0")
    k.e("s_and_saveexec_b64 s[48:49], vcc")
    k.e("s_cbranch_execz K1_END")
    k.e("v_lshlrev_b32 v29, 2, v0")
    for r in range(16):
        k.e(f"ds_read_b32 v{32+r}, v29 offset:{512*r}")
    k.e("s_waitcnt lgkmcnt(0)")
    for r in range(1, 16):
        k.e(f"v_add_f32 v32, v32, v{32+r}")
    k.e("s_lshl_b32 s43, s42, 14")
    k.e("s_lshl_b32 s44, s41, 9")
    k.e("s_add_u32 s43, s43, s44")
    k.e("v_add_u32 v29, s43, v29")
    k.e("buffer_store_dword v32, v29, s[32:35], 0 offen")
    k.e("s_waitcnt vmcnt(0)")
    k.e("s_endpgm")
    k.lab("K1_FFN")
    k.srd(24, 12, 512 * 1376 * 2)
    k.srd(28, 14, 512 * 1376 * 2)
    k.e("s_sub_u32 s41, s2, 256")
    k.e("s_mov_b32 s42, 0")
    k.e("s_cmp_ge_u32 s41, 86"); k.e("s_cselect_b32 s42, 2, 0")
    k.e("s_mul_i32 s43, s42, 43"); k.e("s_sub_u32 s41, s41, s43")
    k.e("s_cmp_ge_u32 s41, 43"); k.e("s_cselect_b32 s43, 1, 0"); k.e("s_add_u32 s42, s42, s43")
    k.e("s_mul_i32 s43, s43, 43"); k.e("s_sub_u32 s41, s41, s43")
    k.e("v_and_b32 v1, 3, v0")
    k.e("v_lshrrev_b32 v2, 2, v0")
    k.e("s_mul_i32 s43, s42, 352256")
    k.e("s_lshl_b32 s44, s41, 6")
    k.e("s_add_u32 s43, s43, s44")
    k.e("s_movk_i32 s45, 5504")
    k.e("v_mul_lo_u32 v3, v2, s45")
    k.e("v_lshl_add_u32 v3, v1, 4, v3")
    k.e("v_add_u32 v3, s43, v3")
    k.e("s_lshl_b32 s44, s42, 8")
    k.e("v_lshlrev_b32 v4, 2, v2")
    k.e("v_add_u32 v4, s44, v4")
    k.e("buffer_load_dword v10, v4, s[20:23], 0 offen")
    k.e("buffer_load_dwordx4 v[32:35], v3, s[24:27], 0 offen")
    k.e("buffer_load_dwordx4 v[36:39], v3, s[24:27], 0 offen offset:2752")
    k.e("buffer_load_dwordx4 v[40:43], v3, s[28:31], 0 offen")
    k.e("buffer_load_dwordx4 v[44:47], v3, s[28:31], 0 offen offset:2752")
    for a in range(16):
        k.e(f"v_mov_b32 v{60+a}, 0")
    k.e("s_waitcnt vmcnt(0)")
    for i in range(2):
        xsplit(k, 10, i)
        for d in range(4):
            k.e(f"v_dot2c_f32_bf16 v{60+2*d}, v{32+4*i+d}, v27")
            k.e(f"v_dot2c_f32_bf16 v{61+2*d}, v{32+4*i+d}, v28")
            k.e(f"v_dot2c_f32_bf16 v{68+2*d}, v{40+4*i+d}, v27")
            k.e(f"v_dot2c_f32_bf16 v{69+2*d}, v{40+4*i+d}, v28")
    k.e("v_lshlrev_b32 v29, 7, v2")
    k.e("v_lshl_add_u32 v29, v1, 5, v29")
    k.e("ds_write_b128 v29, v[60:63]")
    k.e("ds_write_b128 v29, v[64:67] offset:16")
    k.e("ds_write_b128 v29, v[68:71] offset:8192")
    k.e("ds_write_b128 v29, v[72:75] offset:8208")
    k.e("s_waitcnt lgkmcnt(0)")
    k.e("s_barrier")
    k.e("v_and_b32 v29, 31, v0")
    k.e("v_lshlrev_b32 v29, 2, v29")
    k.e("v_bfe_u32 v30, v0, 5, 1")
    k.e("v_lshl_add_u32 v29, v30, 13, v29")
    k.e("v_lshrrev_b32 v30, 6, v0")
    k.e("v_lshl_add_u32 v29, v30, 11, v29")
    for r in range(16):
        k.e(f"ds_read_b32 v{32+r}, v29 offset:{128*r}")
    k.e("s_waitcnt lgkmcnt(0)")
    for r in range(1, 16):
        k.e(f"v_add_f32 v32, v32, v{32+r}")
    k.e("v_lshlrev_b32 v29, 2, v0")
    k.e("ds_write_b32 v29, v32 offset:16384")
    k.e("s_waitcnt lgkmcnt(0)")
    k.e("s_barrier")
    k.e("v_cmp_gt_u32 vcc, 64, v0")
    k.e("s_and_saveexec_b64 s[48:49], vcc")
    k.e("s_cbranch_execz K1_END")
    for p in range(4):
        k.e(f"ds_read_b32 v{32+p}, v29 offset:{16384+256*p}")
    k.e("s_waitcnt lgkmcnt(0)")
    k.e("v_add_f32 v32, v32, v33"); k.e("v_add_f32 v34, v34, v35"); k.e("v_add_f32 v32, v32, v34")
    k.e("v_and_b32 v30, 31, v0")
    k.e("v_lshlrev_b32 v30, 2, v30")
    k.e("v_bfe_u32 v31, v0, 5, 1")
    k.e(f"v_lshl_add_u32 v30, v31, 15, v30")
    k.e("s_lshl_b32 s43, s42, 13")
    k.e("s_lshl_b32 s44, s41, 7")
    k.e("s_add_u32 s43, s43, s44")
    k.e(f"s_add_u32 s43, s43, {GP_OFF:#x}")
    k.e("v_add_u32 v30, s43, v30")
    k.e("buffer_store_dword v32, v30, s[32:35], 0 offen")
    k.e("s_waitcnt vmcnt(0)")
    k.lab("K1_END")
    k.e("s_endpgm")
    return name, k


def gen_k2():
    k = K(); name = "k2_kernel"; kernel_header(k, name)
    k.e("s_cmp_ge_u32 s2, 342")
    k.e("s_cbranch_scc1 K2_END")
    k.e("s_load_dwordx2 s[8:9], s[0:1], 24")
    k.e("s_load_dwordx2 s[10:11], s[0:1], 104")
    k.e("s_load_dwordx2 s[16:17], s[0:1], 72")
    k.e("s_waitcnt lgkmcnt(0)")
    k.srd(32, 10, WS_BYTES)
    k.e("s_cmp_ge_u32 s2, 256")
    k.e("s_cbranch_scc1 K2_FFN")
    k.srd(28, 8, 4 << 20)
    k.e("s_lshr_b32 s41, s2, 3")
    k.e("s_and_b32 s42, s2, 7")
    k.e("v_and_b32 v5, 63, v0"); k.e("v_lshrrev_b32 v6, 6, v0")
    k.e("v_and_b32 v7, 15, v5"); k.e("v_lshrrev_b32 v8, 4, v5")
    k.e("s_lshl_b32 s43, s41, 8")
    k.e("s_lshl_b32 s44, s42, 6")
    k.e("v_lshl_add_u32 v9, v6, 4, v7")
    k.e("v_add_u32 v9, s44, v9")
    k.e("v_lshlrev_b32 v26, 13, v9")
    k.e("v_lshl_add_u32 v26, v8, 6, v26")
    k.e("v_add_u32 v26, s43, v26")
    for s in range(4):
        k.e(f"buffer_load_dwordx4 v[{68+4*s}:{71+4*s}], v26, s[28:31], 0 offen offset:{16*s}")
    k.e("v_and_b32 v29, 127, v0")
    k.e("v_lshlrev_b32 v29, 2, v29")
    k.e("s_lshl_b32 s44, s41, 9")
    k.e("v_add_u32 v30, s44, v29")
    for m in range(8):
        k.e(f"s_mov_b32 s{50+m}, {m*16384}")
    for m in range(8):
        k.e(f"buffer_load_dword v{32+m}, v30, s[32:35], s{50+m} offen")
    k.e("s_waitcnt vmcnt(0)")
    for m in range(1, 8):
        k.e(f"v_add_f32 v32, v32, v{32+m}")
    k.e("v_cvt_pk_bf16_f32 v32, v32, v32")
    k.e("v_lshrrev_b32 v29, 1, v29")
    k.e("ds_write_b16 v29, v32")
    k.e("s_waitcnt lgkmcnt(0)")
    k.e("s_barrier")
    k.e("v_lshlrev_b32 v29, 6, v8")
    for s in range(4):
        k.e(f"ds_read_b128 v[{32+4*s}:{35+4*s}], v29 offset:{16*s}")
    for a in range(4):
        k.e(f"v_mov_b32 v{84+a}, 0")
    k.e("s_nop 1")
    k.e("s_waitcnt lgkmcnt(0)")
    for s in range(4):
        k.e(f"v_mfma_f32_16x16x32_bf16 v[84:87], v[{68+4*s}:{71+4*s}], v[{32+4*s}:{35+4*s}], v[84:87]")
    k.e("s_nop 7"); k.e("s_nop 1")
    k.e(f"s_mov_b32 s45, {f32bits(SC):#x}")
    for a in range(4):
        k.e(f"v_mul_f32 v{84+a}, s45, v{84+a}")
    k.e("v_cvt_pk_bf16_f32 v88, v84, v85")
    k.e("v_cvt_pk_bf16_f32 v89, v86, v87")
    k.e("s_lshl_b32 s46, s41, 10")
    k.e("s_lshl_b32 s47, s42, 7")
    k.e("s_add_u32 s46, s46, s47")
    k.e(f"s_add_u32 s46, s46, {QA_OFF:#x}")
    k.e("v_lshlrev_b32 v29, 5, v6")
    k.e("v_lshl_add_u32 v29, v8, 3, v29")
    k.e("v_add_u32 v29, s46, v29")
    k.e("v_cmp_eq_u32 vcc, 0, v7")
    k.e("s_and_saveexec_b64 s[48:49], vcc")
    k.e("buffer_store_dwordx2 v[88:89], v29, s[32:35], 0 offen")
    k.e("s_waitcnt vmcnt(0)")
    k.e("s_endpgm")
    k.lab("K2_FFN")
    k.srd(36, 16, 1376 * 512 * 2)
    k.e("s_sub_u32 s41, s2, 256")
    k.e("s_lshl_b32 s44, s41, 14")
    k.e("v_lshlrev_b32 v5, 2, v0")
    k.e("v_add_u32 v5, s44, v5")
    for i in range(16):
        if i % 4 == 0 and i:
            k.e("v_add_u32 v5, 4096, v5")
        k.e(f"buffer_load_dword v{64+i}, v5, s[36:39], 0 offen offset:{(i%4)*1024}")
    k.e("v_and_b32 v29, 15, v0")
    k.e("v_lshlrev_b32 v29, 2, v29")
    k.e("s_lshl_b32 s44, s41, 6")
    k.e(f"s_add_u32 s44, s44, {GP_OFF:#x}")
    k.e("v_add_u32 v30, s44, v29")
    k.e("s_movk_i32 s50, 8192"); k.e("s_movk_i32 s51, 16384"); k.e("s_movk_i32 s52, 24576")
    k.e("buffer_load_dword v32, v30, s[32:35], 0 offen")
    for r in range(1, 4):
        k.e(f"buffer_load_dword v{32+r}, v30, s[32:35], s{49+r} offen")
    k.e(f"v_add_u32 v30, {UP_OFF-GP_OFF:#x}, v30")
    k.e("buffer_load_dword v36, v30, s[32:35], 0 offen")
    for r in range(1, 4):
        k.e(f"buffer_load_dword v{36+r}, v30, s[32:35], s{49+r} offen")
    k.e("s_waitcnt vmcnt(0)")
    k.e("v_add_f32 v32, v32, v33"); k.e("v_add_f32 v34, v34, v35"); k.e("v_add_f32 v32, v32, v34")
    k.e("v_add_f32 v36, v36, v37"); k.e("v_add_f32 v38, v38, v39"); k.e("v_add_f32 v36, v36, v38")
    k.e("v_cvt_pk_bf16_f32 v32, v32, v36")
    k.e("v_lshlrev_b32 v33, 16, v32")
    k.e("v_and_b32 v34, 0xffff0000, v32")
    k.e(f"v_mul_f32 v35, {f32bits(-1.4426950408889634):#x}, v33")
    k.e("v_exp_f32 v35, v35"); k.e("s_nop 0")
    k.e("v_add_f32 v35, 1.0, v35")
    k.e("v_rcp_f32 v35, v35"); k.e("s_nop 0")
    k.e("v_mul_f32 v35, v33, v35")
    k.e("v_cvt_pk_bf16_f32 v35, v35, v35")
    k.e("v_lshlrev_b32 v35, 16, v35")
    k.e("v_mul_f32 v35, v35, v34")
    k.e("v_cvt_pk_bf16_f32 v35, v35, v35")
    k.e("v_and_b32 v35, 0xffff, v35")
    k.e("ds_write_b32 v29, v35")
    k.e("s_waitcnt lgkmcnt(0)")
    k.e("s_barrier")
    k.e("v_mov_b32 v29, 0")
    for p in range(4):
        k.e(f"ds_read_b128 v[{40+4*p}:{43+4*p}], v29 offset:{16*p}")
    k.e("v_mov_b32 v60, 0"); k.e("v_mov_b32 v61, 0")
    k.e("s_waitcnt lgkmcnt(0)")
    for i in range(16):
        k.e(f"v_lshlrev_b32 v30, 16, v{40+i}")
        k.e(f"v_dot2c_f32_bf16 v60, v{64+i}, v{40+i}")
        k.e(f"v_dot2c_f32_bf16 v61, v{64+i}, v30")
    k.e("s_lshl_b32 s44, s41, 11")
    k.e(f"s_add_u32 s44, s44, {BP_OFF:#x}")
    k.e("v_lshlrev_b32 v29, 3, v0")
    k.e("v_add_u32 v29, s44, v29")
    k.e("buffer_store_dwordx2 v[60:61], v29, s[32:35], 0 offen")
    k.e("s_waitcnt vmcnt(0)")
    k.lab("K2_END")
    k.e("s_endpgm")
    return name, k


PITCH = 1040
TILE_BYTES = 64 * PITCH
RED_OFF = TILE_BYTES
RED2_OFF = RED_OFF + 256
PX_OFF = RED2_OFF + 256
K3_LDS = PX_OFF + 2048


def gen_k3():
    k = K(); name = "k3_kernel"; kernel_header(k, name)
    k.e("s_cmp_ge_u32 s2, 256")
    k.e("s_cbranch_scc1 K3_END")
    k.e("s_load_dwordx2 s[4:5], s[0:1], 8")
    k.e("s_load_dwordx2 s[10:11], s[0:1], 104")
    k.e("s_waitcnt lgkmcnt(0)")
    k.srd(20, 4, 8 << 20)
    k.srd(32, 10, WS_BYTES)
    k.e("s_and_b32 s40, s2, 7")
    k.e("s_lshr_b32 s41, s2, 3")
    k.e("s_and_b32 s42, s41, 1")
    k.e("s_lshr_b32 s41, s41, 1")
    k.e("s_lshl_b32 s41, s41, 3")
    k.e("s_add_u32 s41, s41, s40")
    k.e("v_and_b32 v1, 63, v0"); k.e("v_lshrrev_b32 v2, 6, v0")
    k.e("v_and_b32 v3, 15, v1"); k.e("v_lshrrev_b32 v4, 4, v1")
    k.e("s_nop 0")
    k.e("v_readfirstlane_b32 s43, v2")
    k.e("s_nop 3")
    k.e("s_lshl_b32 s44, s41, 16")
    k.e("s_lshl_b32 s45, s43, 14")
    k.e("s_add_u32 s44, s44, s45")
    k.e("v_lshlrev_b32 v5, 4, v1")
    k.e("v_add_u32 v5, s44, v5")
    k.e(f"s_mul_i32 s45, s43, {16*PITCH}")
    k.e("s_mov_b32 m0, s45")
    for i in range(16):
        k.e("s_nop 0")
        k.e("buffer_load_dwordx4 v5, s[20:23], 0 offen lds")
        if i < 15:
            k.e("v_add_u32 v5, 1024, v5")
            k.e(f"s_add_u32 m0, m0, {PITCH}")
    k.e("s_lshl_b32 s45, s42, 14")
    k.e(f"s_add_u32 s45, s45, {QA_OFF:#x}")
    k.e("v_lshlrev_b32 v6, 10, v3")
    k.e("v_lshl_add_u32 v6, v4, 4, v6")
    k.e("v_add_u32 v6, s45, v6")
    for s in range(16):
        k.e(f"buffer_load_dwordx4 v[{16+4*s}:{19+4*s}], v6, s[32:35], 0 offen offset:{64*s}")
    k.e("s_waitcnt vmcnt(0)")
    k.e("s_barrier")
    k.e(f"s_mul_i32 s45, s43, {16*PITCH}")
    k.e(f"s_movk_i32 s46, {PITCH}")
    k.e("v_mul_lo_u32 v7, v3, s46")
    k.e("v_lshl_add_u32 v7, v4, 4, v7")
    k.e("v_add_u32 v7, s45, v7")
    for s in range(16):
        k.e(f"ds_read_b128 v[{80+4*s}:{83+4*s}], v7 offset:{64*s}")
    for a in range(4):
        k.e(f"v_mov_b32 v{208+a}, 0")
    k.e("s_nop 1")
    for s in range(16):
        k.e(f"s_waitcnt lgkmcnt({15-s})")
        k.e(f"v_mfma_f32_16x16x32_bf16 v[208:211], v[{80+4*s}:{83+4*s}], v[{16+4*s}:{19+4*s}], v[208:211]")
    k.e("s_nop 7"); k.e("s_nop 1")
    k.e("v_max_f32 v216, v208, v209")
    k.e("v_max3_f32 v216, v216, v210, v211")
    group_reduce16(k, "v_max_f32", 216, 217)
    k.e("s_lshl_b32 s45, s43, 6")
    k.e(f"s_add_u32 s45, s45, {RED_OFF}")
    k.e("v_lshlrev_b32 v218, 2, v3")
    k.e("v_add_u32 v219, s45, v218")
    k.e("ds_write_b32 v219, v216")
    k.e("s_waitcnt lgkmcnt(0)")
    k.e("s_barrier")
    k.e(f"v_add_u32 v219, {RED_OFF}, v218")
    for w in range(4):
        k.e(f"ds_read_b32 v{220+w}, v219 offset:{64*w}")
    k.e("s_waitcnt lgkmcnt(0)")
    k.e("v_max_f32 v216, v220, v221")
    k.e("v_max3_f32 v216, v216, v222, v223")
    for a in range(4):
        k.e(f"v_sub_f32 v{208+a}, v{208+a}, v216")
        k.e(f"v_exp_f32 v{208+a}, v{208+a}")
    k.e("s_nop 0")
    k.e("v_add_f32 v217, v208, v209"); k.e("v_add_f32 v217, v217, v210"); k.e("v_add_f32 v217, v217, v211")
    group_reduce16(k, "v_add_f32", 217, 220)
    k.e("s_lshl_b32 s45, s43, 6")
    k.e(f"s_add_u32 s45, s45, {RED2_OFF}")
    k.e("v_add_u32 v219, s45, v218")
    k.e("ds_write_b32 v219, v217")
    k.e("v_cvt_pk_bf16_f32 v224, v208, v209")
    k.e("v_cvt_pk_bf16_f32 v225, v210, v211")
    k.e("s_lshl_b32 s45, s43, 9")
    k.e(f"s_add_u32 s45, s45, {PX_OFF}")
    k.e("v_lshlrev_b32 v219, 3, v1")
    k.e("v_add_u32 v219, s45, v219")
    k.e("ds_write_b64 v219, v[224:225]")
    k.e("s_waitcnt lgkmcnt(0)")
    k.e("s_barrier")
    k.e("v_lshlrev_b32 v219, 3, v1")
    k.e(f"v_add_u32 v219, {PX_OFF}, v219")
    for w in range(4):
        k.e(f"ds_read_b64 v[{224+2*w}:{225+2*w}], v219 offset:{512*w}")
    k.e(f"v_add_u32 v219, {RED2_OFF}, v218")
    for w in range(4):
        k.e(f"ds_read_b32 v{240+w}, v219 offset:{64*w}")
    k.e("v_lshrrev_b32 v8, 2, v3")
    k.e("v_lshl_add_u32 v8, v4, 2, v8")
    k.e("v_mul_lo_u32 v8, v8, s46")
    k.e("v_and_b32 v9, 3, v1")
    k.e("v_lshl_add_u32 v8, v9, 3, v8")
    k.e("s_lshl_b32 s45, s43, 8")
    k.e("v_add_u32 v8, s45, v8")
    for a in range(32):
        k.e(f"v_mov_b32 v{80+a}, 0")
    k.e("s_waitcnt lgkmcnt(0)")
    k.e("v_add_f32 v240, v240, v241"); k.e("v_add_f32 v242, v242, v243"); k.e("v_add_f32 v240, v240, v242")
    for ct in range(8):
        for kb in range(2):
            b = 112 + 8 * ct + 4 * kb
            off = kb * 32 * PITCH + ct * 32
            k.e(f"ds_read_b64_tr_b16 v[{b}:{b+1}], v8 offset:{off}")
            k.e(f"ds_read_b64_tr_b16 v[{b+2}:{b+3}], v8 offset:{off+16*PITCH}")
    for ct in range(8):
        k.e(f"s_waitcnt lgkmcnt({min(15, 28-4*ct)})")
        for kb in range(2):
            b = 112 + 8 * ct + 4 * kb
            k.e(f"v_mfma_f32_16x16x32_bf16 v[{80+4*ct}:{83+4*ct}], v[{b}:{b+3}], v[{224+4*kb}:{227+4*kb}], v[{80+4*ct}:{83+4*ct}]")
    k.e("s_nop 7"); k.e("s_nop 1")
    k.e("s_lshl_b32 s45, s41, 15")
    k.e("s_lshl_b32 s47, s42, 14")
    k.e("s_add_u32 s45, s45, s47")
    k.e("s_lshl_b32 s47, s43, 8")
    k.e("s_add_u32 s45, s45, s47")
    k.e(f"s_add_u32 s45, s45, {OP_OFF:#x}")
    k.e("v_lshlrev_b32 v10, 10, v3")
    k.e("v_lshl_add_u32 v10, v4, 3, v10")
    k.e("v_add_u32 v10, s45, v10")
    for ct in range(8):
        k.e(f"v_cvt_pk_bf16_f32 v{112+2*ct}, v{80+4*ct}, v{81+4*ct}")
        k.e(f"v_cvt_pk_bf16_f32 v{113+2*ct}, v{82+4*ct}, v{83+4*ct}")
        k.e(f"buffer_store_dwordx2 v[{112+2*ct}:{113+2*ct}], v10, s[32:35], 0 offen offset:{32*ct}")
    k.e("v_cmp_gt_u32 vcc, 16, v0")
    k.e("s_and_saveexec_b64 s[48:49], vcc")
    k.e("s_lshl_b32 s45, s42, 13")
    k.e("s_lshl_b32 s47, s41, 2")
    k.e("s_add_u32 s45, s45, s47")
    k.e("v_lshlrev_b32 v10, 9, v0")
    k.e("v_add_u32 v10, s45, v10")
    k.e(f"v_add_u32 v11, {M_OFF:#x}, v10")
    k.e("buffer_store_dword v216, v11, s[32:35], 0 offen")
    k.e(f"v_add_u32 v11, {L_OFF:#x}, v10")
    k.e("buffer_store_dword v240, v11, s[32:35], 0 offen")
    k.e("s_waitcnt vmcnt(0)")
    k.lab("K3_END")
    k.e("s_endpgm")
    return name, k


def gen_k4():
    k = K(); name = "k4_kernel"; kernel_header(k, name)
    k.e("s_cmp_ge_u32 s2, 256")
    k.e("s_cbranch_scc1 K4_END")
    k.e("s_load_dwordx2 s[4:5], s[0:1], 32")
    k.e("s_load_dwordx2 s[10:11], s[0:1], 104")
    k.e("s_waitcnt lgkmcnt(0)")
    k.srd(20, 4, 4 << 20)
    k.srd(32, 10, WS_BYTES)
    k.e("s_lshr_b32 s41, s2, 3")
    k.e("s_and_b32 s42, s2, 7")
    k.e("v_and_b32 v1, 63, v0")
    k.e("v_and_b32 v3, 15, v0")
    k.e("v_lshrrev_b32 v4, 4, v0")
    k.e("s_lshl_b32 s43, s41, 9")
    k.e("v_lshlrev_b32 v5, 2, v1")
    k.e("v_add_u32 v5, s43, v5")
    k.e(f"v_add_u32 v6, {M_OFF:#x}, v5")
    k.e("buffer_load_dword v10, v6, s[32:35], 0 offen")
    k.e("buffer_load_dword v12, v6, s[32:35], 0 offen offset:256")
    k.e(f"v_add_u32 v6, {L_OFF:#x}, v5")
    k.e("buffer_load_dword v11, v6, s[32:35], 0 offen")
    k.e("buffer_load_dword v13, v6, s[32:35], 0 offen offset:256")
    k.e("v_and_b32 v7, 7, v0")
    k.e("v_lshrrev_b32 v8, 3, v0")
    k.e("s_lshl_b32 s43, s41, 10")
    k.e("s_lshl_b32 s44, s42, 7")
    k.e("s_add_u32 s43, s43, s44")
    k.e(f"s_add_u32 s43, s43, {OP_OFF:#x}")
    k.e("v_lshlrev_b32 v6, 17, v8")
    k.e("v_lshl_add_u32 v6, v7, 4, v6")
    k.e("v_add_u32 v6, s43, v6")
    k.e("s_mov_b32 s50, 0x8000"); k.e("s_mov_b32 s51, 0x10000"); k.e("s_mov_b32 s52, 0x18000")
    k.e("buffer_load_dwordx4 v[16:19], v6, s[32:35], 0 offen")
    for i in range(1, 4):
        k.e(f"buffer_load_dwordx4 v[{16+4*i}:{19+4*i}], v6, s[32:35], s{49+i} offen")
    k.e("s_lshl_b32 s43, s42, 19")
    k.e("s_lshl_b32 s44, s41, 8")
    k.e("s_add_u32 s43, s43, s44")
    k.e("v_lshlrev_b32 v6, 15, v4")
    k.e("v_lshl_add_u32 v6, v3, 4, v6")
    k.e("v_add_u32 v6, s43, v6")
    k.e("s_movk_i32 s53, 8192"); k.e("s_movk_i32 s54, 16384"); k.e("s_movk_i32 s55, 24576")
    k.e("buffer_load_dwordx4 v[32:35], v6, s[20:23], 0 offen")
    for i in range(1, 4):
        k.e(f"buffer_load_dwordx4 v[{32+4*i}:{35+4*i}], v6, s[20:23], s{52+i} offen")
    k.e("s_waitcnt vmcnt(8)")
    k.e("v_max_f32 v100, v10, v12")
    wave_reduce(k, "v_max_f32", 100, 101)
    k.e("v_sub_f32 v10, v10, v100"); k.e("v_sub_f32 v12, v12, v100")
    k.e("v_exp_f32 v10, v10"); k.e("v_exp_f32 v12, v12"); k.e("s_nop 0")
    k.e("v_mul_f32 v100, v10, v11"); k.e("v_fmac_f32 v100, v12, v13")
    wave_reduce(k, "v_add_f32", 100, 101)
    k.e("v_rcp_f32 v100, v100"); k.e("s_nop 0")
    k.e("v_mul_f32 v10, v10, v100"); k.e("v_mul_f32 v12, v12, v100")
    k.e("v_and_b32 v101, 15, v8")
    k.e("v_lshlrev_b32 v101, 4, v101")
    k.e("v_cmp_gt_u32 vcc, 128, v0")
    k.e("s_nop 1")
    k.e("v_cndmask_b32 v14, v12, v10, vcc")
    for i in range(4):
        k.e(f"v_add_u32 v102, {4*i}, v101")
        k.e(f"ds_bpermute_b32 v{48+i}, v102, v14")
    for a in range(8):
        k.e(f"v_mov_b32 v{52+a}, 0")
    k.e("s_waitcnt vmcnt(4) lgkmcnt(0)")
    for i in range(4):
        for d in range(4):
            k.e(f"v_lshlrev_b32 v102, 16, v{16+4*i+d}")
            k.e(f"v_fmac_f32 v{52+2*d}, v{48+i}, v102")
            k.e(f"v_and_b32 v102, 0xffff0000, v{16+4*i+d}")
            k.e(f"v_fmac_f32 v{53+2*d}, v{48+i}, v102")
    k.e("v_lshlrev_b32 v101, 8, v8")
    k.e("v_lshl_add_u32 v101, v7, 5, v101")
    k.e("ds_write_b128 v101, v[52:55]")
    k.e("ds_write_b128 v101, v[56:59] offset:16")
    k.e("s_waitcnt lgkmcnt(0)")
    k.e("s_barrier")
    k.e("v_lshlrev_b32 v101, 2, v1")
    for r in range(32):
        k.e(f"ds_read_b32 v{64+r}, v101 offset:{256*r}")
    k.e("s_waitcnt lgkmcnt(0)")
    for r in range(1, 32):
        k.e(f"v_add_f32 v64, v64, v{64+r}")
    k.e("ds_write_b32 v101, v64 offset:8192")
    k.e("s_waitcnt lgkmcnt(0)")
    k.e("s_barrier")
    k.e("v_lshlrev_b32 v101, 4, v4")
    k.e("ds_read_b128 v[64:67], v101 offset:8192")
    for a in range(8):
        k.e(f"v_mov_b32 v{52+a}, 0")
    k.e("s_waitcnt vmcnt(0) lgkmcnt(0)")
    for i in range(4):
        for d in range(4):
            k.e(f"v_lshlrev_b32 v102, 16, v{32+4*i+d}")
            k.e(f"v_fmac_f32 v{52+2*d}, v{64+i}, v102")
            k.e(f"v_and_b32 v102, 0xffff0000, v{32+4*i+d}")
            k.e(f"v_fmac_f32 v{53+2*d}, v{64+i}, v102")
    k.e("v_lshlrev_b32 v101, 9, v4")
    k.e("v_lshl_add_u32 v101, v3, 5, v101")
    k.e("ds_write_b128 v101, v[52:55] offset:12288")
    k.e("ds_write_b128 v101, v[56:59] offset:12304")
    k.e("s_waitcnt lgkmcnt(0)")
    k.e("s_barrier")
    k.e("v_cmp_gt_u32 vcc, 128, v0")
    k.e("s_and_saveexec_b64 s[48:49], vcc")
    k.e("s_cbranch_execz K4_END")
    k.e("v_lshlrev_b32 v101, 2, v0")
    for r in range(16):
        k.e(f"ds_read_b32 v{64+r}, v101 offset:{12288+512*r}")
    k.e("s_waitcnt lgkmcnt(0)")
    for r in range(1, 16):
        k.e(f"v_add_f32 v64, v64, v{64+r}")
    k.e("s_lshl_b32 s43, s42, 14")
    k.e("s_lshl_b32 s44, s41, 9")
    k.e("s_add_u32 s43, s43, s44")
    k.e(f"s_add_u32 s43, s43, {CP_OFF:#x}")
    k.e("v_add_u32 v101, s43, v101")
    k.e("buffer_store_dword v64, v101, s[32:35], 0 offen")
    k.e("s_waitcnt vmcnt(0)")
    k.lab("K4_END")
    k.e("s_endpgm")
    return name, k


def gen_k5():
    k = K(); name = "k5_kernel"; kernel_header(k, name)
    k.e("s_cmp_ge_u32 s2, 256")
    k.e("s_cbranch_scc1 K5_END")
    k.e("s_load_dwordx2 s[6:7], s[0:1], 40")
    k.e("s_load_dwordx2 s[10:11], s[0:1], 104")
    k.e("s_waitcnt lgkmcnt(0)")
    k.srd(24, 6, 4 << 20)
    k.srd(32, 10, WS_BYTES)
    k.e("s_lshr_b32 s41, s2, 3")
    k.e("s_and_b32 s42, s2, 7")
    k.e("v_and_b32 v7, 7, v0")
    k.e("v_lshrrev_b32 v8, 3, v0")
    k.e("s_lshl_b32 s43, s41, 17")
    k.e("s_lshl_b32 s44, s42, 7")
    k.e("s_add_u32 s43, s43, s44")
    k.e("v_lshlrev_b32 v6, 12, v8")
    k.e("v_lshl_add_u32 v6, v7, 4, v6")
    k.e("v_add_u32 v6, s43, v6")
    for i in range(4):
        k.e(f"buffer_load_dwordx4 v[{32+4*i}:{35+4*i}], v6, s[24:27], 0 offen offset:{1024*i}")
    k.e("v_and_b32 v29, 127, v0")
    k.e("v_lshlrev_b32 v29, 2, v29")
    k.e("s_lshl_b32 s44, s41, 9")
    k.e(f"s_add_u32 s44, s44, {CP_OFF:#x}")
    k.e("v_add_u32 v30, s44, v29")
    for m in range(8):
        k.e(f"s_mov_b32 s{50+m}, {m*16384}")
    for m in range(8):
        k.e(f"buffer_load_dword v{48+m}, v30, s[32:35], s{50+m} offen")
    k.e("s_waitcnt vmcnt(0)")
    for m in range(1, 8):
        k.e(f"v_add_f32 v48, v48, v{48+m}")
    k.e("v_cvt_pk_bf16_f32 v48, v48, v48")
    k.e("v_and_b32 v48, 0xffff, v48")
    k.e("ds_write_b32 v29, v48")
    k.e("s_waitcnt lgkmcnt(0)")
    k.e("s_barrier")
    k.e("v_lshlrev_b32 v29, 4, v8")
    k.e("ds_read_b128 v[48:51], v29")
    for a in range(8):
        k.e(f"v_mov_b32 v{52+a}, 0")
    k.e("s_waitcnt lgkmcnt(0)")
    for i in range(4):
        k.e(f"v_lshlrev_b32 v30, 16, v{48+i}")
        for d in range(4):
            k.e(f"v_dot2c_f32_bf16 v{52+2*d}, v{32+4*i+d}, v{48+i}")
            k.e(f"v_dot2c_f32_bf16 v{53+2*d}, v{32+4*i+d}, v30")
    k.e("v_lshlrev_b32 v29, 8, v8")
    k.e("v_lshl_add_u32 v29, v7, 5, v29")
    k.e("ds_write_b128 v29, v[52:55] offset:1024")
    k.e("ds_write_b128 v29, v[56:59] offset:1040")
    k.e("s_waitcnt lgkmcnt(0)")
    k.e("s_barrier")
    k.e("v_cmp_gt_u32 vcc, 64, v0")
    k.e("s_and_saveexec_b64 s[48:49], vcc")
    k.e("s_cbranch_execz K5_END")
    k.e("v_lshlrev_b32 v29, 2, v0")
    for r in range(32):
        k.e(f"ds_read_b32 v{64+r}, v29 offset:{1024+256*r}")
    k.e("s_waitcnt lgkmcnt(0)")
    for r in range(1, 32):
        k.e(f"v_add_f32 v64, v64, v{64+r}")
    k.e("s_lshl_b32 s43, s41, 11")
    k.e("s_lshl_b32 s44, s42, 8")
    k.e("s_add_u32 s43, s43, s44")
    k.e(f"s_add_u32 s43, s43, {AP_OFF:#x}")
    k.e("v_add_u32 v29, s43, v29")
    k.e("buffer_store_dword v64, v29, s[32:35], 0 offen")
    k.e("s_waitcnt vmcnt(0)")
    k.lab("K5_END")
    k.e("s_endpgm")
    return name, k


def gen_k6():
    k = K(); name = "k6_kernel"; kernel_header(k, name)
    k.e("s_cmp_ge_u32 s2, 16")
    k.e("s_cbranch_scc1 K6_END")
    k.e("s_load_dwordx2 s[4:5], s[0:1], 0")
    k.e("s_load_dwordx2 s[6:7], s[0:1], 80")
    k.e("s_load_dwordx2 s[8:9], s[0:1], 88")
    k.e("s_load_dwordx2 s[10:11], s[0:1], 104")
    k.e("s_waitcnt lgkmcnt(0)")
    k.srd(20, 4, 1024); k.srd(24, 6, 1024); k.srd(28, 8, 1024)
    k.srd(32, 10, BP_OFF + 86 * 2048)
    k.e("v_and_b32 v1, 7, v0")
    k.e("v_lshrrev_b32 v2, 3, v0")
    k.e("v_lshlrev_b32 v3, 2, v0")
    k.e("buffer_load_dword v4, v3, s[20:23], 0 offen")
    k.e("buffer_load_dword v5, v3, s[24:27], 0 offen")
    k.e("s_lshl_b32 s43, s2, 7")
    k.e(f"s_add_u32 s43, s43, {AP_OFF:#x}")
    k.e("v_lshlrev_b32 v6, 11, v2")
    k.e("v_lshl_add_u32 v6, v1, 4, v6")
    k.e("v_add_u32 v6, s43, v6")
    k.e("buffer_load_dwordx4 v[16:19], v6, s[32:35], 0 offen")
    k.e(f"v_add_u32 v7, {BP_OFF-AP_OFF:#x}, v6")
    k.e("s_mov_b32 s50, 0x10000"); k.e("s_mov_b32 s51, 0x20000")
    k.e("buffer_load_dwordx4 v[48:51], v7, s[32:35], 0 offen")
    k.e("buffer_load_dwordx4 v[52:55], v7, s[32:35], s50 offen")
    k.e("buffer_load_dwordx4 v[56:59], v7, s[32:35], s51 offen")
    k.e("s_waitcnt vmcnt(0)")
    for a in range(4):
        k.e(f"v_add_f32 v{48+a}, v{48+a}, v{52+a}")
        k.e(f"v_add_f32 v{48+a}, v{48+a}, v{56+a}")
    k.e("v_lshlrev_b32 v8, 16, v4"); k.e("v_lshlrev_b32 v9, 16, v5"); k.e("v_mul_f32 v8, v8, v9")
    k.e("v_and_b32 v10, 0xffff0000, v4"); k.e("v_and_b32 v11, 0xffff0000, v5"); k.e("v_mul_f32 v10, v10, v11")
    k.e("v_cvt_pk_bf16_f32 v8, v8, v10")
    k.e("v_lshlrev_b32 v9, 16, v8"); k.e("v_and_b32 v8, 0xffff0000, v8"); k.e("v_add_f32 v8, v8, v9")
    wave_reduce(k, "v_add_f32", 8, 9)
    k.e("v_lshlrev_b32 v12, 7, v2")
    k.e("v_lshl_add_u32 v12, v1, 4, v12")
    k.e("ds_write_b128 v12, v[16:19]")
    k.e("ds_write_b128 v12, v[48:51] offset:4096")
    k.e("v_lshrrev_b32 v13, 6, v0"); k.e("v_lshlrev_b32 v13, 2, v13")
    k.e("ds_write_b32 v13, v8 offset:8192")
    k.e("s_waitcnt lgkmcnt(0)")
    k.e("s_barrier")
    k.e("v_cmp_gt_u32 vcc, 32, v0")
    k.e("s_and_saveexec_b64 s[48:49], vcc")
    k.e("s_cbranch_execz K6_END")
    k.e("v_lshlrev_b32 v12, 2, v0")
    for r in range(32):
        k.e(f"ds_read_b32 v{16+r}, v12 offset:{128*r}")
    for r in range(32):
        k.e(f"ds_read_b32 v{48+r}, v12 offset:{4096+128*r}")
    k.e("v_mov_b32 v13, 8192")
    k.e("ds_read_b128 v[8:11], v13")
    k.e("s_waitcnt lgkmcnt(0)")
    for r in range(1, 32):
        k.e(f"v_add_f32 v16, v16, v{16+r}")
        k.e(f"v_add_f32 v48, v48, v{48+r}")
    k.e("v_add_f32 v8, v8, v9"); k.e("v_add_f32 v10, v10, v11"); k.e("v_add_f32 v8, v8, v10")
    k.e("v_cvt_pk_bf16_f32 v8, v8, v8"); k.e("v_lshlrev_b32 v8, 16, v8")
    k.e(f"v_mul_f32 v8, {f32bits(-1.4426950408889634):#x}, v8")
    k.e("v_exp_f32 v8, v8"); k.e("s_nop 0")
    k.e("v_add_f32 v8, 1.0, v8")
    k.e("v_rcp_f32 v8, v8"); k.e("s_nop 0")
    k.e("v_cvt_pk_bf16_f32 v8, v8, v8"); k.e("v_lshlrev_b32 v8, 16, v8")
    k.e("v_sub_f32 v9, 1.0, v8")
    k.e("v_cvt_pk_bf16_f32 v9, v9, v9"); k.e("v_lshlrev_b32 v9, 16, v9")
    k.e("v_cvt_pk_bf16_f32 v16, v16, v48")
    k.e("v_lshlrev_b32 v17, 16, v16"); k.e("v_and_b32 v18, 0xffff0000, v16")
    k.e("v_mul_f32 v17, v8, v17"); k.e("v_mul_f32 v18, v9, v18")
    k.e("v_cvt_pk_bf16_f32 v17, v17, v18")
    k.e("v_lshlrev_b32 v18, 16, v17"); k.e("v_and_b32 v17, 0xffff0000, v17")
    k.e("v_add_f32 v17, v17, v18")
    k.e("v_cvt_pk_bf16_f32 v17, v17, v17")
    k.e("s_lshl_b32 s43, s2, 6")
    k.e("v_lshlrev_b32 v12, 1, v0")
    k.e("v_add_u32 v12, s43, v12")
    k.e("buffer_store_short v17, v12, s[28:31], 0 offen")
    k.e("s_waitcnt vmcnt(0)")
    k.lab("K6_END")
    k.e("s_endpgm")
    return name, k


def main():
    out = ["; generated by gen2.py - hand-written gfx950 assembly (MLA absorbed decode + SwiGLU mix)"]
    out.append("; @launch kernel=k1_kernel grid=(428,1,1) block=(256,1,1) lds=17408")
    out.append("; @launch kernel=k2_kernel grid=(342,1,1) block=(256,1,1) lds=1024")
    out.append(f"; @launch kernel=k3_kernel grid=(256,1,1) block=(256,1,1) lds={K3_LDS}")
    out.append("; @launch kernel=k4_kernel grid=(256,1,1) block=(256,1,1) lds=20480")
    out.append("; @launch kernel=k5_kernel grid=(256,1,1) block=(256,1,1) lds=9216")
    out.append("; @launch kernel=k6_kernel grid=(16,1,1) block=(256,1,1) lds=8448")
    out.append('.amdgcn_target "amdgcn-amd-amdhsa--gfx950"')
    out.append(".text")
    names = []
    for g in (gen_k1, gen_k2, gen_k3, gen_k4, gen_k5, gen_k6):
        n, k = g()
        names.append(n)
        out.append(k.text())
    out.append('.section .rodata,"a"')
    out.append(".p2align 6")
    for n in names:
        out.append(kernel_desc(n))
        out.append(".p2align 6")
    open(sys.argv[1] if len(sys.argv) > 1 else f"cdna_kernels/{NAME}.s", "w").write("\n".join(out))


if __name__ == "__main__":
    main()
```
